```python
import torch

def _softmax(x, axis=-1):
    return torch.softmax(x, dim=axis)

def _gelu(x):
    return torch.nn.functional.gelu(x, approximate='tanh')

def _silu(x):
    return torch.nn.functional.silu(x)

def _sigmoid(x):
    return torch.sigmoid(x)

def _layernorm(x, axis=-1, eps=1e-05):
    m = x.mean(dim=axis, keepdim=True)
    v = x.var(dim=axis, keepdim=True, unbiased=False)
    return (x - m) / torch.sqrt(v + eps)

def _scatter_add(tgt, idx, src, axis=0):
    return tgt.clone().index_add_(axis, idx, src)

def _segment_sum(src, seg, n):
    out = torch.zeros((n,) + src.shape[1:], dtype=src.dtype)
    return out.index_add_(0, seg, src)

def _pad(x, pw):
    flat = tuple((v for pair in reversed(pw) for v in pair))
    return torch.nn.functional.pad(x, flat)
kernel_name = 'adaLN_cond__compressed_kv_cla__mixer_channel_mlp__prompt'

def setup_inputs():

    _w = lambda a: (lambda t: t.to(torch.bfloat16) if t.is_floating_point() else t)(torch.as_tensor(a))

    def _A_setup():
        B, H, Sq, Sk, D, M = (1, 32, 2048, 2048, 128, 512)
        Dc = 4 * D
        return {'x': _w((lambda *s: torch.randn(*s, dtype=torch.bfloat16) * 0.05)(B, Sq, M)), 'c_kv': _w((lambda *s: torch.randn(*s, dtype=torch.bfloat16) * 0.4)(B, Sk, Dc)), 'w_q': _w((lambda *s: torch.randn(*s, dtype=torch.bfloat16) * 3.2)(M, H, D) * M ** (-0.5)), 'w_uk': _w((lambda *s: torch.randn(*s, dtype=torch.bfloat16) * 3.2)(Dc, H, D) * Dc ** (-0.5)), 'w_uv': _w((lambda *s: torch.randn(*s, dtype=torch.bfloat16) * 0.4)(Dc, H, D) * Dc ** (-0.5)), 'w_o': _w((lambda *s: torch.randn(*s, dtype=torch.bfloat16) * 0.4)(H, D, M) * (H * D) ** (-0.5))}
    _A_in = _A_setup()

    def _B_setup():
        B, S, D, F = (1, 2048, 512, 1792)
        return {'x': _w((lambda *s: torch.randn(*s, dtype=torch.bfloat16) * 0.05)(B, S, D)), 'w1': _w((lambda *s: torch.randn(*s, dtype=torch.bfloat16) * 1.6)(D, F) * D ** (-0.5)), 'b1': _w((lambda *s: torch.randn(*s, dtype=torch.bfloat16) * 0.4)(F)), 'w2': _w((lambda *s: torch.randn(*s, dtype=torch.bfloat16) * 0.05)(F, D) * F ** (-0.5)), 'b2': _w((lambda *s: torch.randn(*s, dtype=torch.bfloat16) * 0.05)(D))}
    _B_in = _B_setup()
    return {'A_x': _A_in['x'], 'A_c_kv': _A_in['c_kv'], 'A_w_q': _A_in['w_q'], 'A_w_uk': _A_in['w_uk'], 'A_w_uv': _A_in['w_uv'], 'A_w_o': _A_in['w_o'], 'B_x': _B_in['x'], 'B_w1': _B_in['w1'], 'B_b1': _B_in['b1'], 'B_w2': _B_in['w2'], 'B_b2': _B_in['b2'], 'c': _w((lambda *s: torch.randn(*s, dtype=torch.bfloat16) * 0.1)(1, 512) * 8.0), 'w_mod': _w((lambda *s: torch.randn(*s, dtype=torch.bfloat16) * 0.1)(512, 6 * 512) * 512 ** (-0.5) * 8.0)}

def reference(A_x, A_c_kv, A_w_q, A_w_uk, A_w_uv, A_w_o, B_x, B_w1, B_b1, B_w2, B_b2, c, w_mod):

    def _A_ref(x, c_kv, w_q, w_uk, w_uv, w_o):
        B, Sq, M = (x.shape[0], x.shape[1], x.shape[2])
        Sk = c_kv.shape[1]
        H, D = (w_q.shape[1], w_q.shape[2])
        q = torch.einsum('bqm,mhd->bhqd', x, w_q)
        k = torch.einsum('bkc,chd->bhkd', c_kv, w_uk)
        v = torch.einsum('bkc,chd->bhkd', c_kv, w_uv)
        scores = torch.einsum('bhqd,bhkd->bhqk', q, k) * D ** (-0.5)
        off = Sk - Sq
        qi = torch.arange(Sq)[:, None]
        kj = torch.arange(Sk)[None, :]
        cmask = kj <= qi + off
        scores = torch.where(cmask[None, None], scores, -1000000000.0)
        p = _softmax(scores, axis=-1)
        ctx = torch.einsum('bhqk,bhkd->bhqd', p, v)
        return torch.einsum('bhqd,hdm->bqm', ctx, w_o)

    def _B_ref(x, w1, b1, w2, b2):
        y = _layernorm(x, axis=-1)
        h = _gelu(torch.einsum('bsd,df->bsf', y, w1) + b1)
        return torch.einsum('bsf,fd->bsd', h, w2) + b2
    x = A_x
    mod = (_silu(c) @ w_mod).reshape(c.shape[0], 6, 1, -1)
    sa, ca, ga, sb, cb, gb = (mod[:, 0].clone(), mod[:, 1].clone(), mod[:, 2].clone(), mod[:, 3].clone(), mod[:, 4].clone(), mod[:, 5].clone())
    h = _layernorm(x, axis=-1) * (1 + ca) + sa
    x = x + ga * _A_ref(h, A_c_kv, A_w_q, A_w_uk, A_w_uv, A_w_o)
    h = _layernorm(x, axis=-1) * (1 + cb) + sb
    x = x + gb * _B_ref(h, B_w1, B_b1, B_w2, B_b2)
    return x
```

```python
import json
def kernel(name, body, inner, outer, nthreads, lds, nv, acc, pre=''):
    ld = "\n".join(f"  buffer_load_dwordx4 v[{16+4*j}:{19+4*j}], v1, s[8:11], s22 offen offset:{(j*272)%4096}\n  s_add_u32 s22, s22, 8192" for j in range(16))
    ldsfill = "\n".join(f"  s_add_u32 s22, s22, 8192\n  s_add_u32 m0, s21, {j*nthreads*16}\n  s_nop 0\n  buffer_load_dwordx4 v1, s[8:11], s22 offen lds" for j in range(65536//(nthreads*16)))
    s = f"""
.text
.globl {name}
.p2align 8
.type {name},@function
{name}:
  s_cmp_ge_u32 s2, 256
  s_cbranch_scc1 {name}_end
  s_load_dwordx2 s[4:5], s[0:1], 120
  s_waitcnt lgkmcnt(0)
  s_mov_b32 s8, s4
  s_mov_b32 s9, s5
  s_mov_b32 s10, 0x10000000
  s_mov_b32 s11, 0x20000
  v_lshlrev_b32 v1, 4, v0
  v_and_b32 v2, 63, v0
  v_lshlrev_b32 v2, 4, v2
  v_lshrrev_b32 v3, 6, v0
  s_nop 0
  v_readfirstlane_b32 s20, v3
  s_nop 3
  s_lshl_b32 s21, s20, 10        ; wave*1024
  s_and_b32 s22, s2, 7
  s_lshl_b32 s22, s22, 21
  s_add_u32 s22, s22, 0x1000000
  s_mov_b32 s23, 0
{ld}
{ldsfill}
{pre}
  s_waitcnt vmcnt(0)
  s_mov_b32 m0, s21
  s_mov_b32 s13, 0
  s_lshl_b32 s3, s2, 12
  s_lshl_b32 s29, s20, 9
  s_add_u32 s3, s3, s29
  s_barrier
  s_memtime s[14:15]
  s_memrealtime s[16:17]
  s_waitcnt lgkmcnt(0)
{name}_outer:
  s_mov_b32 s12, {inner}
{name}_loop:
{body}
  s_sub_u32 s12, s12, 1
  s_cmp_lg_u32 s12, 0
  s_cbranch_scc1 {name}_loop
  s_memtime s[24:25]
  s_memrealtime s[26:27]
  s_waitcnt lgkmcnt(0)
  s_sub_u32 s24, s24, s14
  s_sub_u32 s26, s26, s16
  v_mov_b32 v4, s24
  v_mov_b32 v5, s26
  v_mov_b32 v6, s3
  s_add_u32 s3, s3, 8
  s_mov_b64 exec, 1
  buffer_store_dwordx2 v[4:5], v6, s[8:11], 0 offen
  s_mov_b64 exec, -1
  s_add_u32 s13, s13, 1
  s_cmp_lt_u32 s13, {outer}
  s_cbranch_scc1 {name}_outer
  s_waitcnt vmcnt(0)
{name}_end:
  s_endpgm
"""
    kd = f"""
.section .rodata,"a"
.p2align 6
.amdhsa_kernel {name}
  .amdhsa_next_free_vgpr {nv}
  .amdhsa_next_free_sgpr 102
  .amdhsa_accum_offset {acc}
  .amdhsa_group_segment_fixed_size 0
  .amdhsa_kernarg_size 128
  .amdhsa_user_sgpr_count 2
  .amdhsa_user_sgpr_kernarg_segment_ptr 1
  .amdhsa_system_sgpr_workgroup_id_x 1
.end_amdhsa_kernel
"""
    launch = f"; @launch kernel={name} grid=(256,1,1) block=({nthreads},1,1) lds={lds}"
    return launch, s, kd

def fr(i): return f"v[{16+4*i}:{19+4*i}]"
def m32(acc, a, b): return f"  v_mfma_f32_32x32x16_bf16 a[{acc*16}:{acc*16+15}], {fr(a)}, {fr(b)}, a[{acc*16}:{acc*16+15}]"
def m16(acc, a, b): return f"  v_mfma_f32_16x16x32_bf16 a[{acc*4}:{acc*4+3}], {fr(a)}, {fr(b)}, a[{acc*4}:{acc*4+3}]"
tests = []
def add(name, lines, flop_units, nthreads=256, inner=8, outer=40):
    nv, acc = (512, 256) if nthreads == 256 else (256, 128)
    tests.append((name, kernel(name + "_kernel", "\n".join(lines), inner, outer, nthreads, 65536, nv, acc), flop_units * inner, outer))

def main():
  pass
if __name__ != '__main__':
    add = lambda *a, **k: None
L = []
for ks in range(2):
    for i in range(4):
        for j in range(4):
            L.append(m32(i*4+j, ks*4+i, 8+ks*4+j))
add("m32_4x4", L, 32)
L = []
for i in range(8):
    for j in range(8):
        L.append(m16(i*8+j, i, 8+j))
add("m16_8x8", L, 32)
L = [m32(i%16, 0, 8) for i in range(32)]
add("m32_same", L, 32)
L = [m16(i%64, 0, 8) for i in range(64)]
add("m16_same", L, 32)
L = []
for blk in range(4):
    for k in range(8):
        L.append(m32(blk, k, 8+k))
add("m32_chain8", L, 32)
L = []
for blk in range(16):
    for k in range(4):
        L.append(m16(blk, (k+blk)%8, 8+(k+2*blk)%8))
add("m16_chain4", L, 32)
L = []
for ks in range(2):
    n = 0
    for i in range(4):
        for j in range(4):
            L.append(m32(i*4+j, ks*4+i, 8+ks*4+j))
            if n % 2 == 0:
                q = n//2
                f = ((1-ks)*4+q) if q < 4 else 8+(1-ks)*4+(q-4)
                L.append(f"  ds_read_b128 {fr(f)}, v2 offset:{(ks*8+q)*1024*3 % 65536}")
            n += 1
    L.append("  s_waitcnt lgkmcnt(0)")
add("m32_4x4_lds", L, 32)
L = []
n = 0
for i in range(8):
    for j in range(8):
        L.append(m16(i*8+j, i, 8+j))
        n += 1
        if j == 7 : L.append(f"  ds_read_b128 {fr(i)}, v2 offset:{(i)*1024*3 % 65536}")
        if i == 7 : L.append(f"  ds_read_b128 {fr(8+j)}, v2 offset:{(8+j)*1024*3 % 65536}")
L.append("  s_waitcnt lgkmcnt(0)")
add("m16_8x8_lds", L, 32)

out = []
for name, (l, s, kd), n, o in tests: out.append(l)
out.append('.amdgcn_target "amdgcn-amd-amdhsa--gfx950"')
for name, (l, s, kd), n, o in tests: out.append(s)
for name, (l, s, kd), n, o in tests: out.append(kd)
if __name__ == "__main__":
    open("mb2.s", "w").write("\n".join(out))
    json.dump([(name, n, o) for name, _, n, o in tests], open("mb2.json", "w"))
```

```python
import json
from mb2_gen import kernel
tests = []
def add(name, f, n=256, inner=20, nt=256):
    L = []
    for i in range(n): L += f(i)
    nv, acc = (512, 256) if nt == 256 else (256, 128)
    l, s, kd = kernel(name + "_kernel", "\n".join(L), inner, 2, nt, 65536, nv, acc, "")
    s = s.replace(f"{name}_kernel_loop:", f".p2align 3\n{name}_kernel_loop:").replace(f"{name}_kernel_outer:", f"{name}_kernel_outer:\n s_barrier")
    s = s.replace("  s_memtime s[24:25]", "  s_barrier\n  s_memtime s[24:25]")
    tests.append((name, (l, s, kd), n * inner, 2))
F = lambda i: f"  v_fma_f32 v{80+i%8}, v{90+i%8}, v{100+i%8}, v{80+i%8}"
F32 = lambda i: f"  v_fmac_f32 v{80+i%8}, v{90+i%8}, v{100+i%8}"
PF = lambda i: f"  v_pk_fma_f32 v[{80+2*(i%4)}:{81+2*(i%4)}], v[{90+2*(i%4)}:{91+2*(i%4)}], v[{100+2*(i%4)}:{101+2*(i%4)}], v[{80+2*(i%4)}:{81+2*(i%4)}]"
PM = lambda i: f"  v_pk_mul_f32 v[{80+2*(i%4)}:{81+2*(i%4)}], v[{90+2*(i%4)}:{91+2*(i%4)}], v[{100+2*(i%4)}:{101+2*(i%4)}]"
E = lambda i: f"  v_exp_f32 v{110+i%8}, v{90+i%8}"
R = lambda i: f"  v_rcp_f32 v{110+i%8}, v{90+i%8}"
C = lambda i: f"  v_cvt_pk_bf16_f32 v{110+i%8}, v{90+i%8}, v{100+i%8}"
AR = lambda i: f"  v_accvgpr_read_b32 v{110+i%8}, a{i%64}"
for nt in (256, 512):
    t = f"w{nt//64}_"
    add(t+"fma", lambda i: [F(i)], nt=nt)
    add(t+"fmac32", lambda i: [F32(i)], nt=nt)
    add(t+"pkfma", lambda i: [PF(i)], nt=nt)
    add(t+"pkmul", lambda i: [PM(i)], nt=nt)
    add(t+"exp", lambda i: [E(i)], nt=nt)
    add(t+"exp_fma", lambda i: [E(i), F32(i)], nt=nt)
    add(t+"exp_2fma", lambda i: [E(i), F32(i), F32(i+1)], nt=nt)
    add(t+"exp_pk", lambda i: [E(i), PF(i)], nt=nt)
    add(t+"exp_2pk", lambda i: [E(i), PF(i), PF(i+1)], nt=nt)
    add(t+"cvt", lambda i: [C(i)], nt=nt)
    add(t+"accrd", lambda i: [AR(i)], nt=nt)
out = []
for name, (l, s, kd), n, o in tests: out.append(l)
out.append('.amdgcn_target "amdgcn-amd-amdhsa--gfx950"')
for name, (l, s, kd), n, o in tests: out.append(s)
for name, (l, s, kd), n, o in tests: out.append(kd)
open("mb10.s", "w").write("\n".join(out))
json.dump([(name, n, o) for name, _, n, o in tests], open("mb10.json", "w"))
```
